```python
import torch

def _softmax(x, axis=-1):
    return torch.softmax(x, dim=axis)
def _gelu(x):
    return torch.nn.functional.gelu(x, approximate="tanh")
def _silu(x):
    return torch.nn.functional.silu(x)
def _sigmoid(x):
    return torch.sigmoid(x)
def _layernorm(x, axis=-1, eps=1e-5):
    m = x.mean(dim=axis, keepdim=True)
    v = x.var(dim=axis, keepdim=True, unbiased=False)
    return (x - m) / torch.sqrt(v + eps)
def _scatter_add(tgt, idx, src, axis=0):
    return tgt.clone().index_add_(axis, idx, src)
def _segment_sum(src, seg, n):
    out = torch.zeros((n,) + src.shape[1:], dtype=src.dtype)
    return out.index_add_(0, seg, src)
def _pad(x, pw):
    flat = tuple(v for pair in reversed(pw) for v in pair)
    return torch.nn.functional.pad(x, flat)

kernel_name = 'standalone__kv_cache_quant_int4_int2_kv_with_per_channel_or_per_token_scales__prompt'

def setup_inputs():

    _w = (lambda a: (lambda t: t.to(torch.bfloat16) if t.is_floating_point() else t)(torch.as_tensor(a)))
    B = 1
    Sq = 2048
    Skv = 2048
    Hq = 32
    Hkv = 32
    Dh = 128
    bits = 3
    G = 128
    if G <= 0 or G >= Skv:
        G = max(1, Skv // 2)
    Skv = (Skv // G) * G
    ngk = Skv // G
    qmax = (1 << bits) - 1
    return {
        "q": _w((lambda *s: torch.randn(*s, dtype=torch.bfloat16) * 1.6)(B, Hq, Sq, Dh)),
        "qk": _w(torch.randint(0, qmax + 1, (B, Hkv, Skv, Dh)).to(torch.int32)),
        "qv": _w(torch.randint(0, qmax + 1, (B, Hkv, Skv, Dh)).to(torch.int32)),
        "k_scales": _w(torch.abs((lambda *s: torch.randn(*s, dtype=torch.bfloat16) * 1.6)(B, Hkv, ngk, Dh)) * 0.05 + 0.02),
        "k_zeros": _w((lambda *s: torch.randn(*s, dtype=torch.bfloat16) * 1.6)(B, Hkv, ngk, Dh) + float(qmax) / 2.0),
        "v_scales": _w(torch.abs((lambda *s: torch.randn(*s, dtype=torch.bfloat16) * 0.05)(B, Hkv, Skv, 1)) * 0.05 + 0.02),
        "v_zeros": _w((lambda *s: torch.randn(*s, dtype=torch.bfloat16) * 0.05)(B, Hkv, Skv, 1) + float(qmax) / 2.0),
    }

def reference(q, qk, qv, k_scales, k_zeros, v_scales, v_zeros):
    B, Hq, Sq, Dh = q.shape
    Hkv, Skv = qk.shape[1], qk.shape[2]
    ngk = k_scales.shape[2]
    G = Skv // ngk
    ks = (lambda x, n, axis: torch.repeat_interleave(x, n, dim=axis))(k_scales, G, axis=2)
    kz = (lambda x, n, axis: torch.repeat_interleave(x, n, dim=axis))(k_zeros, G, axis=2)
    k = ((lambda x, dt: x.to(dt))(qk, q.dtype) - kz) * ks
    v = ((lambda x, dt: x.to(dt))(qv, q.dtype) - v_zeros) * v_scales
    rep = Hq // Hkv
    if rep > 1:
        k = (lambda x, n, axis: torch.repeat_interleave(x, n, dim=axis))(k, rep, axis=1)
        v = (lambda x, n, axis: torch.repeat_interleave(x, n, dim=axis))(v, rep, axis=1)
    scale = float(Dh) ** -0.5
    logits = torch.einsum("bhqd,bhkd->bhqk", q, k) * scale
    p = _softmax(logits, axis=-1)
    o = torch.einsum("bhqk,bhkd->bhqd", p, v)
    return o
```

```python
import re


def R(kind, lo, n=1):
    return [(kind, lo + i) for i in range(n)]


def rname(kind, lo, n=1):
    if n == 1:
        return f"{kind}{lo}"
    return f"{kind}[{lo}:{lo+n-1}]"


class Reg:
    def __init__(self, kind, lo, n=1):
        self.kind, self.lo, self.n = kind, lo, n

    def __str__(self):
        return rname(self.kind, self.lo, self.n)

    def regs(self):
        return R(self.kind, self.lo, self.n)

    def sub(self, off, n=1):
        assert off + n <= self.n, (self, off, n)
        return Reg(self.kind, self.lo + off, n)

    def __getitem__(self, i):
        return self.sub(i, 1)


def V(lo, n=1):
    return Reg('v', lo, n)


def A(lo, n=1):
    return Reg('a', lo, n)


def S(lo, n=1):
    return Reg('s', lo, n)


def regs_of(x):
    if isinstance(x, Reg):
        return x.regs()
    if isinstance(x, str):
        if x in ('vcc', 'm0', 'exec', 'scc'):
            return [(x, 0)]
    return []


class Ins:
    def __init__(self, text, kind, reads=(), writes=(), cost=4, **kw):
        self.text = text
        self.kind = kind
        self.reads = set()
        self.writes = set()
        for r in reads:
            self.reads.update(regs_of(r))
        for w in writes:
            self.writes.update(regs_of(w))
        self.cost = cost
        self.srcc = set()
        self.tag = kw.get('tag')
        self.wide_store = kw.get('wide_store', False)
        self.store_data = set()
        self.nops = kw.get('nops', 1)
        self.comment = kw.get('comment')

    def __str__(self):
        t = self.text
        if self.comment:
            t += "   ; " + self.comment
        return t


def op(x):
    if isinstance(x, Reg):
        return str(x)
    if isinstance(x, bool):
        raise ValueError
    if isinstance(x, int):
        if -16 <= x <= 64:
            return str(x)
        return hex(x & 0xffffffff)
    if isinstance(x, float):
        return repr(x)
    return str(x)


def mfma(d, a, b, c):
    i = Ins(f"v_mfma_f32_32x32x16_bf16 {d}, {a}, {b}, {op(c)}", 'mfma', [a, b, c], [d], cost=8)
    i.srcc = set(regs_of(c))
    i.srca = set(regs_of(a)) | set(regs_of(b))
    i.passes = 8
    return i


def mfma16(d, a, b, c):
    i = Ins(f"v_mfma_f32_16x16x32_bf16 {d}, {a}, {b}, {op(c)}", 'mfma', [a, b, c], [d], cost=8)
    i.srcc = set(regs_of(c))
    i.srca = set(regs_of(a)) | set(regs_of(b))
    i.passes = 4
    return i


TRANS = ('v_exp_f32', 'v_rcp_f32', 'v_log_f32', 'v_rsq_f32', 'v_sqrt_f32')


def valu(name, d, *srcs, extra_reads=(), extra_writes=(), suffix='', rmw=False):
    kind = 'trans' if name.split('_e')[0] in TRANS or name in TRANS else 'valu'
    cost = 8 if kind == 'trans' else 4
    if name.startswith('v_permlane'):
        kind = 'permlane'
    text = f"{name} {op(d)}" + ''.join(f", {op(s)}" for s in srcs) + suffix
    reads = list(srcs) + list(extra_reads)
    writes = [d] + list(extra_writes)
    if rmw or name.startswith('v_fmac') or name.startswith('v_permlane') or name.startswith('v_writelane'):
        reads.append(d)
    if name.startswith('v_permlane') and 'swap' in name:
        writes.append(srcs[0])
    if name.startswith('v_cndmask') and len(srcs) == 2:
        reads.append('vcc')
    return Ins(text, kind, reads, writes, cost=cost)


def salu(name, d, *srcs, scc=True, reads_scc=False):
    text = f"{name} {op(d)}" + ''.join(f", {op(s)}" for s in srcs)
    writes = [d]
    reads = list(srcs)
    if name.startswith('s_cmp'):
        reads = [d] + list(srcs)
        writes = ['scc']
    elif scc and not name.startswith('s_mov'):
        writes.append('scc')
    if reads_scc or name.startswith('s_addc') or name.startswith('s_cselect') or name.startswith('s_subb'):
        reads.append('scc')
    return Ins(text, 'salu', reads, writes)


def ds_read(name, d, addr, offset=0):
    t = f"{name} {d}, {addr}" + (f" offset:{offset}" if offset else '')
    assert 0 <= offset < 65536
    return Ins(t, 'ds_read', [addr], [d])


def ds_write(name, addr, data, offset=0):
    t = f"{name} {addr}, {data}" + (f" offset:{offset}" if offset else '')
    assert 0 <= offset < 65536
    i = Ins(t, 'ds_write', [addr, data], [])
    return i


def buf_load(name, d, voff, srd, soff, offset=0, flags=''):
    assert 0 <= offset < 4096
    t = f"{name} {d}, {voff}, {srd}, {op(soff)} offen" + (f" offset:{offset}" if offset else '') + (' ' + flags if flags else '')
    return Ins(t, 'vmem_load', [voff, srd, soff], [d])


def buf_dma(voff, srd, soff, offset=0, flags=''):
    assert 0 <= offset < 4096
    t = f"buffer_load_dwordx4 {voff}, {srd}, {op(soff)} offen" + (f" offset:{offset}" if offset else '') + (' ' + flags if flags else '') + " lds"
    return Ins(t, 'dma', [voff, srd, soff, 'm0'], [])


def buf_store(name, data, voff, srd, soff, offset=0, flags=''):
    assert 0 <= offset < 4096
    t = f"{name} {data}, {voff}, {srd}, {op(soff)} offen" + (f" offset:{offset}" if offset else '') + (' ' + flags if flags else '')
    i = Ins(t, 'vmem_store', [data, voff, srd, soff], [])
    i.wide_store = data.n >= 3
    i.store_data = set(data.regs())
    return i


def raw(text, kind='other', reads=(), writes=(), **kw):
    return Ins(text, kind, reads, writes, **kw)


def nop(n=0):
    return Ins(f"s_nop {n}", 'nop', nops=n + 1)


def waitcnt(vm=None, lgkm=None):
    parts = []
    if vm is not None:
        assert 0 <= vm <= 63
        parts.append(f"vmcnt({vm})")
    if lgkm is not None:
        assert 0 <= lgkm <= 15
        parts.append(f"lgkmcnt({lgkm})")
    i = Ins("s_waitcnt " + ' '.join(parts), 'wait')
    i.vm, i.lgkm = vm, lgkm
    return i


def barrier():
    return Ins("s_barrier", 'barrier')


def label(n):
    return Ins(f"{n}:", 'label', nops=0)


def comment(t):
    return Ins(f"; {t}", 'label', nops=0)


VALU_KINDS = ('valu', 'trans', 'permlane')
VMEM_KINDS = ('vmem_load', 'vmem_store', 'dma')
DS_KINDS = ('ds_read', 'ds_write')


def required_gap(p, c):
    need = 0
    if p.kind == 'mfma':
        ps = p.passes
        tab_part = {4: 6, 8: 10}[ps]
        tab_ab = {4: 8, 8: 12}[ps]
        tab_war = {4: 3, 8: 7}[ps]
        if c.kind == 'mfma':
            if p.writes & c.srca:
                need = max(need, tab_ab)
            if p.writes & c.srcc:
                if not (p.writes == c.srcc and p.passes == c.passes):
                    need = max(need, tab_part)
            if (p.writes & c.writes) and not (p.writes == c.srcc):
                need = max(need, tab_part)
        elif c.kind in VALU_KINDS or c.kind in VMEM_KINDS or c.kind in DS_KINDS:
            if p.writes & (c.reads | c.writes):
                need = max(need, tab_ab)
            if c.kind in VALU_KINDS and (p.srcc & c.writes):
                need = max(need, tab_war)
            if c.kind in ('ds_read', 'vmem_load') and (p.srcc & c.writes):
                need = max(need, tab_war)
    if p.kind in VALU_KINDS:
        vw = {r for r in p.writes if r[0] in ('v', 'a')}
        sw = {r for r in p.writes if r[0] in ('s', 'vcc')}
        if c.kind == 'mfma' and (vw & c.reads):
            need = max(need, 2)
        if c.kind == 'permlane' and (vw & c.reads):
            need = max(need, 2)
        if p.kind == 'trans' and c.kind in ('valu', 'permlane', 'trans') and (vw & c.reads):
            if c.kind != 'trans':
                need = max(need, 1)
        if ('readlane' in c.text or 'readfirstlane' in c.text) and (vw & c.reads):
            need = max(need, 1)
        if 'dpp' in c.text or 'row_' in c.text or 'quad_perm' in c.text:
            if vw & c.reads:
                need = max(need, 2)
        if sw:
            if c.kind in VMEM_KINDS and (sw & c.reads):
                need = max(need, 5)
            if c.kind in VALU_KINDS and (sw & c.reads):
                need = max(need, 2)
                if 'readlane' in c.text or 'writelane' in c.text:
                    need = max(need, 4)
            if c.kind == 'salu' and (sw & c.reads):
                need = max(need, 4)
        if ('exec', 0) in p.writes:
            if c.kind == 'mfma' or c.kind == 'permlane':
                need = max(need, 4)
            elif c.kind in VALU_KINDS:
                need = max(need, 2)
    if p.kind == 'salu':
        if ('m0', 0) in p.writes and c.kind == 'dma':
            need = max(need, 1)
        if ('exec', 0) in p.writes and c.kind in ('mfma', 'permlane'):
            need = max(need, 4)
    if p.kind == 'vmem_store' and p.wide_store and (p.store_data & c.writes):
        need = max(need, 2)
    return need


def check_hazards(seq, fix=False, window=24):
    out = []
    problems = []
    for c in seq:
        if c.kind == 'label':
            out.append(c)
            continue
        dist = 0
        worst = 0
        who = None
        for p in reversed(out):
            if p.kind == 'label':
                continue
            need = required_gap(p, c)
            if need > dist and need - dist > worst:
                worst = need - dist
                who = p
            dist += p.nops
            if dist >= window:
                break
        if worst > 0:
            problems.append((who, c, worst))
            if fix:
                w = worst
                while w > 0:
                    k = min(w, 16)
                    out.append(nop(k - 1))
                    w -= k
        out.append(c)
    if fix:
        return out, problems
    return problems


class WaitSim:
    def __init__(self):
        self.vm = []
        self.lg = []

    def copy(self):
        w = WaitSim()
        w.vm = list(self.vm)
        w.lg = list(self.lg)
        return w

    def needed(self, c):
        touch = c.reads | c.writes
        vm_n = lg_n = None
        for idx, p in enumerate(self.vm):
            if p.writes & touch:
                vm_n = len(self.vm) - 1 - idx
        for idx, p in enumerate(self.lg):
            if p.writes & touch:
                lg_n = len(self.lg) - 1 - idx
        return vm_n, lg_n

    def step(self, c):
        if c.kind == 'wait':
            if c.vm is not None:
                while len(self.vm) > c.vm:
                    self.vm.pop(0)
            if c.lgkm is not None:
                while len(self.lg) > c.lgkm:
                    self.lg.pop(0)
        elif c.kind in VMEM_KINDS:
            self.vm.append(c)
        elif c.kind in DS_KINDS:
            self.lg.append(c)


def insert_waits(seq, sim=None, lg_extra=None):
    sim = sim or WaitSim()
    out = []
    for c in seq:
        if c.kind not in ('label', 'wait'):
            vm_n, lg_n = sim.needed(c)
            if vm_n is not None or lg_n is not None:
                if lg_n is not None:
                    if lg_extra:
                        lg_n = lg_extra(c, sim, lg_n)
                    lg_n = min(lg_n, 15)
                if vm_n is not None:
                    vm_n = min(vm_n, 63)
                w = waitcnt(vm_n, lg_n)
                sim.step(w)
                out.append(w)
        sim.step(c)
        out.append(c)
    return out, sim


def verify_waits(seq, sim=None):
    sim = sim or WaitSim()
    bad = []
    for c in seq:
        if c.kind not in ('label', 'wait'):
            vm_n, lg_n = sim.needed(c)
            if vm_n is not None or lg_n is not None:
                bad.append(c)
        sim.step(c)
    return bad, sim


def text_of(seq):
    return '\n'.join(('' if i.kind == 'label' else '    ') + str(i) for i in seq) + '\n'
```

```python
import sys
from asmlib import *

KNAME = "standalone__kv_cache_quant_int4_int2_kv_with_per_channel_or_per_token_scales__prompt_kernel"

HEADER = """; Kernarg layout for this problem (80 bytes, ptrs only, base s[0:1]):
"""

O = lambda b, db: V((b * 4 + db) * 16, 16)
SREG = lambda b: V(128 + 16 * b, 16)
P = lambda b: V(160 + 8 * b, 8)
L = lambda b: V(176 + b)
vK, vV, vDMA, vLane = V(178), V(179), V(180), V(181)
vT = lambda i, n=1: V(182 + i, n)
Q = lambda b, ks: A((b * 8 + ks) * 4, 4)
KF = lambda ks: A(64 + 4 * ks, 4)
VF = lambda v: A(96 + 4 * v, 4)

sWg = S(2)
sQ, sOut, sWs = S(8, 4), S(12, 4), S(16, 4)
sWave = S(20)
sSrc = S(21)
sDst = S(22)
sCnt = S(23)
sTmp = lambda i, n=1: S(24 + i, n)
sT0 = S(40, 2)
sR0 = S(42, 2)
sT1 = S(44, 2)
sR1 = S(46, 2)

STAGE = 65536
TILE = 16384


class Opt:
    timing = False
    stamps = False
    force = False
    zero = False
    no_exp = False
    no_add = False
    no_cvt = False
    no_ds = False
    no_dma = False
    no_bar = False
    a0 = 10
    vgap = 8
    kgap = 20
    bargap = 19
    dma_gaps = (28, 30, 0, 2, 4, 6)
    dma_flags = ''
    nstage = 16
    extra_valu = 0


def sm_ops(b, opt):
    s, p, l = SREG(b), P(b), L(b)
    ops = []
    for i in range(16):
        if not opt.no_exp:
            ops.append((i, 1, valu('v_exp_f32', s[i], s[i]), ('exp', b, i)))
        if not opt.no_add:
            ops.append((i + 1, 2, valu('v_add_f32', l, l, s[i]), ('add', b, i)))
    for r in range(8):
        if not opt.no_cvt:
            ops.append((2 * r + 2, 0 if r in (3, 7) else 3, valu('v_cvt_pk_bf16_f32', p[r], s[2 * r], s[2 * r + 1]), ('cvt', b, r)))
    return ops


def dma_slots(opt):
    slots = []
    g = 96 + opt.bargap + 1
    while len(slots) < 16:
        if (g % 32) in opt.dma_gaps:
            slots.append(g)
        g += 1
    return slots


def mainloop(opt):
    NG = 128
    mf = [None] * NG
    gaps = [[] for _ in range(NG)]

    def place(g, order, ins):
        gaps[g % NG].append((order, ins))

    for it in range(4):
        g0 = 32 * it
        for ks in range(8):
            mf[g0 + ks] = mfma(SREG(0), KF(ks), Q(0, ks), 0 if ks == 0 else SREG(0))
            mf[g0 + 16 + ks] = mfma(SREG(1), KF(ks), Q(1, ks), 0 if ks == 0 else SREG(1))
        for u in range(2):
            for db in range(4):
                v = u * 4 + db
                mf[g0 + 8 + v] = mfma(O(1, db), VF(v), P(1).sub(4 * u, 4), O(1, db))
                mf[g0 + 24 + v] = mfma(O(0, db), VF(v), P(0).sub(4 * u, 4), O(0, db))
        for b in range(2):
            for (off, order, ins, tag) in sm_ops(b, opt):
                place(g0 + opt.a0 + 16 * b + off, order, ins)
        if not opt.no_ds:
            for v in range(8):
                place(g0 + opt.vgap + v, 5, ds_read('ds_read_b128', VF(v), vV, it * TILE + 8192 + v * 1024))
            for ks in range(8):
                place(g0 + opt.kgap + ks, 5, ds_read('ds_read_b128', KF(ks), vK, ((it + 1) % 4) * TILE + ks * 1024))
        for x in range(opt.extra_valu):
            place(g0 + (x * 32) // max(opt.extra_valu, 1) if opt.extra_valu <= 32 else g0 + x % 32, 6,
                  valu('v_add_f32', vT(10 + x % 4), vT(14), vT(15)))
    gb = 96 + opt.bargap
    bar = [waitcnt(0, 0)]
    if opt.stamps:
        bar = [raw("s_memtime s[48:49]", 'smem'), raw("s_memrealtime s[50:51]", 'smem'), waitcnt(0, 0),
               raw("s_sub_u32 s52, %d, s23" % opt.nstage, 'other'), raw("s_mov_b32 m0, s52", 'other'),
               raw("v_writelane_b32 v250, s48, m0", 'other'), raw("v_writelane_b32 v251, s50, m0", 'other')]
    if not opt.no_bar:
        bar.append(barrier())
    bar.append(valu('v_xor_b32', vK, STAGE, vK))
    bar.append(valu('v_xor_b32', vV, STAGE, vV))
    for i, x in enumerate(bar):
        place(gb, 10 + i, x)
    slots = dma_slots(opt)
    for n, g in enumerate(slots):
        q4, pc = divmod(n, 4)
        if pc == 0:
            if q4 == 0:
                place(gb, 20, salu('s_xor_b32', sDst, sDst, STAGE))
                place(gb, 21, salu('s_mov_b32', 'm0', sDst))
            else:
                place(g - 1, 20, salu('s_add_u32', 'm0', 'm0', 4096))
                place(g - 1, 21, salu('s_add_u32', sSrc, sSrc, 4096))
        if not opt.no_dma:
            place(g, 7, buf_dma(vDMA, sWs, sSrc, pc * 1024, opt.dma_flags))
    place(slots[-1] + 1, 20, salu('s_add_u32', sSrc, sSrc, STAGE - 3 * 4096))
    seq = []
    for g in range(NG):
        seq.append(mf[g])
        for (o, ins) in sorted(gaps[g], key=lambda x: x[0]):
            seq.append(ins)
    return seq


def b_init_values(opt):
    res = []
    for i in range(16):
        g = opt.a0 + 16 + i
        res.append(g >= 32)
    return res


def tail(opt):
    seq = []
    ops = []
    for (off, order, ins, tag) in sm_ops(1, opt):
        g = opt.a0 + 16 + off
        if g >= 32:
            ops.append((g, order, ins))
    ops.sort(key=lambda x: (x[0], x[1]))
    seq += [o[2] for o in ops]
    seq.append(waitcnt(None, 0))
    for u in range(2):
        for db in range(4):
            v = u * 4 + db
            seq.append(mfma(O(1, db), VF(v), P(1).sub(4 * u, 4), O(1, db)))
    return seq


def srd(dst, base_lo, base_hi, size):
    return [salu('s_mov_b32', dst[0], base_lo), salu('s_and_b32', dst[1], base_hi, 0xffff),
            salu('s_mov_b32', dst[2], size), salu('s_mov_b32', dst[3], 0x20000)]


def prologue(opt):
    seq = []
    e = seq.append
    e(salu('s_cmp_ge_u32', sWg, 256))
    e(raw("s_cbranch_scc1 L_done", 'branch', ['scc']))
    e(raw("s_load_dwordx2 s[4:5], s[0:1], 0", 'smem', [], [S(4, 2)]))
    e(raw("s_load_dwordx2 s[6:7], s[0:1], 56", 'smem', [], [S(6, 2)]))
    e(raw("s_load_dwordx2 s[24:25], s[0:1], 72", 'smem', [], [S(24, 2)]))
    e(valu('v_and_b32', vLane, 63, V(0)))
    e(valu('v_lshrrev_b32', vT(0), 6, V(0)))
    e(nop(0))
    e(valu('v_readfirstlane_b32', sWave, vT(0)))
    e(salu('s_and_b32', sTmp(2), sWg, 7))
    e(salu('s_lshl_b32', sTmp(2), sTmp(2), 2))
    e(salu('s_lshr_b32', sTmp(3), sWg, 6))
    e(salu('s_add_u32', sTmp(2), sTmp(2), sTmp(3)))
    e(salu('s_lshr_b32', sTmp(3), sWg, 3))
    e(salu('s_and_b32', sTmp(3), sTmp(3), 7))
    e(salu('s_lshl_b32', sTmp(4), sTmp(2), 19))
    e(salu('s_lshl_b32', sTmp(5), sTmp(3), 16))
    e(salu('s_add_u32', sTmp(4), sTmp(4), sTmp(5)))
    e(salu('s_lshl_b32', sTmp(5), sTmp(2), 20))
    e(raw("s_waitcnt lgkmcnt(0)", 'other'))
    e(salu('s_add_u32', S(4), S(4), sTmp(4)))
    e(salu('s_addc_u32', S(5), S(5), 0))
    e(salu('s_add_u32', S(6), S(6), sTmp(4)))
    e(salu('s_addc_u32', S(7), S(7), 0))
    e(salu('s_add_u32', sTmp(0), sTmp(0), sTmp(5)))
    e(salu('s_addc_u32', sTmp(1), sTmp(1), 0))
    seq += srd(sQ, S(4), S(5), 65536)
    seq += srd(sOut, S(6), S(7), 65536)
    seq += srd(sWs, sTmp(0), sTmp(1), 1 << 20)
    e(valu('v_lshlrev_b32', vDMA, 4, vLane))
    e(salu('s_lshl_b32', sSrc, sWave, 14))
    e(salu('s_mov_b32', sDst, sSrc))
    e(salu('s_mov_b32', 'm0', sDst))
    e(nop(0))
    for n in range(16):
        q4, pc = divmod(n, 4)
        if pc == 0 and q4 > 0:
            e(salu('s_add_u32', 'm0', 'm0', 4096))
            e(salu('s_add_u32', sSrc, sSrc, 4096))
        e(buf_dma(vDMA, sWs, sSrc, pc * 1024, opt.dma_flags))
    e(salu('s_add_u32', sSrc, sSrc, STAGE - 3 * 4096))
    e(valu('v_and_b32', vT(0), 31, vLane))
    e(valu('v_lshlrev_b32', vT(0), 8, vT(0)))
    e(valu('v_lshrrev_b32', vT(1), 5, vLane))
    e(valu('v_lshlrev_b32', vT(1), 4, vT(1)))
    e(valu('v_add_u32', vT(0), vT(0), vT(1)))
    e(salu('s_lshl_b32', sTmp(6), sWave, 14))
    e(salu('s_add_u32', sTmp(7), sTmp(6), 8192))
    for b in range(2):
        for ks in range(8):
            e(buf_load('buffer_load_dwordx4', Q(b, ks), vT(0), sQ, sTmp(6 + b), ks * 32))
    e(salu('s_xor_b32', sDst, sDst, STAGE))
    e(salu('s_mov_b32', 'm0', sDst))
    e(nop(0))
    slots = dma_slots(opt)
    npre = sum(1 for g in slots if g < 128)
    for n in range(16):
        q4, pc = divmod(n, 4)
        if pc == 0 and q4 > 0 and slots[n] - 1 < 128:
            e(salu('s_add_u32', 'm0', 'm0', 4096))
            e(salu('s_add_u32', sSrc, sSrc, 4096))
        if n < npre:
            e(buf_dma(vDMA, sWs, sSrc, pc * 1024, opt.dma_flags))
    if slots[-1] + 1 < 128:
        e(salu('s_add_u32', sSrc, sSrc, STAGE - 3 * 4096))
    for r in range(128):
        e(valu('v_mov_b32', V(r), 0))
    binit = b_init_values(opt)
    for i in range(16):
        e(valu('v_mov_b32', SREG(1)[i], 0xff800000 if binit[i] else 0))
    for r in range(8):
        e(valu('v_mov_b32', P(1)[r], 0))
        e(valu('v_mov_b32', P(0)[r], 0))
    e(valu('v_mov_b32', L(0), 0))
    e(valu('v_mov_b32', L(1), 0))
    for r in range(32):
        e(valu('v_accvgpr_write_b32', A(96 + r), 0))
    for i in range(6):
        e(valu('v_mov_b32', vT(10 + i), 0))
    e(valu('v_lshlrev_b32', vK, 4, vLane))
    e(valu('v_lshlrev_b32', vV, 4, vLane))
    e(salu('s_mov_b32', sCnt, opt.nstage))
    e(waitcnt(npre, None))
    e(barrier())
    for ks in range(8):
        e(ds_read('ds_read_b128', KF(ks), vK, ks * 1024))
    e(waitcnt(None, 0))
    if opt.timing:
        e(raw("s_memtime s[40:41]", 'smem'))
        e(raw("s_memrealtime s[42:43]", 'smem'))
        e(raw("s_waitcnt lgkmcnt(0)", 'other'))
    return seq


def epilogue(opt):
    seq = []
    e = seq.append
    if opt.timing:
        e(raw("s_memtime s[44:45]", 'smem'))
        e(raw("s_memrealtime s[46:47]", 'smem'))
        e(raw("s_waitcnt lgkmcnt(0)", 'other'))
    for b in range(2):
        e(valu('v_mov_b32', vT(2 * b), L(b)))
        e(valu('v_mov_b32', vT(2 * b + 1), L(b)))
    e(nop(1))
    for b in range(2):
        e(valu('v_permlane32_swap_b32', vT(2 * b), vT(2 * b + 1)))
    for b in range(2):
        e(valu('v_add_f32', L(b), vT(2 * b), vT(2 * b + 1)))
    for b in range(2):
        e(valu('v_rcp_f32', L(b), L(b)))
    e(valu('v_and_b32', vT(4), 31, vLane))
    e(valu('v_lshlrev_b32', vT(4), 8, vT(4)))
    e(valu('v_lshrrev_b32', vT(5), 5, vLane))
    e(valu('v_lshlrev_b32', vT(5), 4, vT(5)))
    e(valu('v_add_u32', vT(4), vT(4), vT(5)))
    e(salu('s_lshl_b32', sTmp(6), sWave, 14))
    e(salu('s_add_u32', sTmp(7), sTmp(6), 8192))
    k = 0
    for b in range(2):
        for db in range(4):
            o = O(b, db)
            for i in range(16):
                e(valu('v_mul_f32', o[i], o[i], L(b)))
            for ee in range(2):
                t = V(200 + 4 * (k % 8), 4)
                k += 1
                base = 8 * ee
                e(valu('v_cvt_pk_bf16_f32', t[0], o[base + 0], o[base + 1]))
                e(valu('v_cvt_pk_bf16_f32', t[1], o[base + 2], o[base + 3]))
                e(valu('v_cvt_pk_bf16_f32', t[2], o[base + 4], o[base + 5]))
                e(valu('v_cvt_pk_bf16_f32', t[3], o[base + 6], o[base + 7]))
                e(nop(1))
                e(valu('v_permlane32_swap_b32', t[0], t[2]))
                e(valu('v_permlane32_swap_b32', t[1], t[3]))
                e(buf_store('buffer_store_dwordx4', t, vT(4), sOut, sTmp(6 + b), db * 64 + ee * 32))
    if opt.timing:
        e(raw("s_load_dwordx2 s[24:25], s[0:1], 72", 'smem', [], [S(24, 2)]))
        e(raw("s_waitcnt lgkmcnt(0)", 'other'))
        e(salu('s_add_u32', S(24), S(24), 64 << 20))
        e(salu('s_addc_u32', S(25), S(25), 0))
        seq += srd(S(28, 4), S(24), S(25), 1 << 20)
        e(salu('s_sub_u32', S(44), S(44), S(40)))
        e(salu('s_sub_u32', S(46), S(46), S(42)))
        e(salu('s_lshl_b32', S(32), sWg, 2))
        e(salu('s_add_u32', S(32), S(32), sWave))
        e(salu('s_lshl_b32', S(32), S(32), 4))
        e(valu('v_mov_b32', V(240), S(44)))
        e(valu('v_mov_b32', V(241), S(46)))
        e(valu('v_mov_b32', V(242), 0))
        e(raw("v_cmp_eq_u32 vcc, 0, v181", 'valu', [vLane], ['vcc']))
        e(raw("s_and_saveexec_b64 s[34:35], vcc", 'salu', ['vcc'], [S(34, 2), 'exec']))
        e(raw("buffer_store_dwordx2 v[240:241], v242, s[28:31], s32 offen", 'other'))
        e(raw("s_mov_b64 exec, s[34:35]", 'salu'))
        if opt.stamps:
            e(salu('s_lshl_b32', S(32), S(32), 4))
            e(salu('s_add_u32', S(32), S(32), 65536))
            e(valu('v_lshlrev_b32', V(242), 3, vLane))
            e(raw("v_cmp_gt_u32 vcc, 16, v181", 'valu', [vLane], ['vcc']))
            e(raw("s_and_saveexec_b64 s[34:35], vcc", 'salu', ['vcc'], [S(34, 2), 'exec']))
            e(raw("buffer_store_dwordx2 v[250:251], v242, s[28:31], s32 offen", 'other'))
            e(raw("s_mov_b64 exec, s[34:35]", 'salu'))
    return seq


def build(opt):
    pro = prologue(opt)
    loop = mainloop(opt)
    def lg_extra(c, sim, n):
        if c.kind == 'mfma':
            idx = -1
            want = 'V' if any(r[0] == 'a' and 96 <= r[1] < 128 for r in c.srca) else 'K'
            for j, p in enumerate(sim.lg):
                lo = min(r[1] for r in p.writes) if p.writes else -1
                if want == 'V' and 96 <= lo < 128:
                    idx = j
                if want == 'K' and 64 <= lo < 96:
                    idx = j
            if idx >= 0:
                return min(n, len(sim.lg) - 1 - idx)
        return n
    l1, sim = insert_waits(loop, WaitSim(), lg_extra)
    l2, sim2 = insert_waits(loop, sim.copy(), lg_extra)
    bad, _ = verify_waits(l2 + l2, sim.copy())
    assert not bad, [str(b) for b in bad]
    body = l2
    probs = check_hazards(body + body)
    for p, c, w in probs:
        if not opt.force:
            print("HAZARD loop:", p, "->", c, "short by", w, file=sys.stderr)
    if probs and not opt.force:
        raise SystemExit("hazards in loop")
    tl = tail(opt)
    ep = epilogue(opt)
    pro_fixed, _ = check_hazards(pro, fix=True)
    probs = check_hazards(pro_fixed + body)
    assert opt.force or not probs, [(str(a), str(b), c) for a, b, c in probs]
    loop_ctl = [salu('s_sub_u32', sCnt, sCnt, 1), salu('s_cmp_lg_u32', sCnt, 0), raw("s_cbranch_scc1 L_loop", 'branch', ['scc'])]
    tailctx = body[-40:]
    if opt.force:
        rest, _ = check_hazards(loop_ctl + tl + ep, fix=True)
    else:
        full, _ = check_hazards(tailctx + loop_ctl + tl + ep, fix=True)
        assert all(full[i] is tailctx[i] for i in range(len(tailctx)))
        rest = full[len(tailctx):]
    seq = pro_fixed + [raw(".p2align 6", 'label', nops=0), label("L_loop")] + body + rest + [label("L_done"), raw("s_endpgm")]
    return seq


def kernel_text(opt, name=KNAME, launch="; @launch grid=(256,1,1) block=(256,1,1) lds=131072"):
    seq = build(opt)
    txt = HEADER + launch + "\n"
    txt += '.amdgcn_target "amdgcn-amd-amdhsa--gfx950"\n.text\n'
    txt += f".globl {name}\n.p2align 8\n.type {name},@function\n{name}:\n"
    txt += text_of(seq)
    txt += f""".section .rodata,"a"
.p2align 6
.amdhsa_kernel {name}
  .amdhsa_next_free_vgpr 512
  .amdhsa_next_free_sgpr 102
  .amdhsa_accum_offset 256
  .amdhsa_group_segment_fixed_size 0
  .amdhsa_kernarg_size 80
  .amdhsa_user_sgpr_count 2
  .amdhsa_user_sgpr_kernarg_segment_ptr 1
  .amdhsa_system_sgpr_workgroup_id_x 1
  .amdhsa_float_denorm_mode_32 3
.end_amdhsa_kernel
"""
    return txt


if __name__ == "__main__":
    opt = Opt()
    out = sys.argv[1]
    for a in sys.argv[2:]:
        k, v = a.split('=')
        cur = getattr(opt, k)
        if isinstance(cur, bool):
            v = bool(int(v))
        elif isinstance(cur, int):
            v = int(v)
        elif isinstance(cur, tuple):
            v = tuple(int(x) for x in v.split(','))
        setattr(opt, k, v)
    open(out, 'w').write(kernel_text(opt))
```

```python
import sys
from gen_attn import KNAME, HEADER

def filler(tok, n):
    r = 128 + (n % 16)
    r2 = 144 + (n % 16)
    if tok == 'exp':
        return f"v_exp_f32 v{r}, v{r2}"
    if tok == 'expi':
        return f"v_exp_f32 v{r}, v{r}"
    if tok == 'add':
        return f"v_add_f32 v176, v176, v{r2}"
    if tok == 'addi':
        return f"v_add_f32 v{160 + n % 8}, v{r2}, v{r2}"
    if tok == 'mov':
        return f"v_mov_b32 v{160 + n % 8}, v{r2}"
    if tok == 'cvt':
        return f"v_cvt_pk_bf16_f32 v{160 + n % 8}, v{r2}, v{r2}"
    if tok == 'pkadd':
        return f"v_pk_add_f32 v[{160 + 2 * (n % 4)}:{161 + 2 * (n % 4)}], v[{144 + 2 * (n % 8)}:{145 + 2 * (n % 8)}], v[{144 + 2 * (n % 8)}:{145 + 2 * (n % 8)}]"
    if tok == 'pkacc':
        return f"v_pk_add_f32 v[176:177], v[176:177], v[{144 + 2 * (n % 8)}:{145 + 2 * (n % 8)}]"
    if tok == 'dot2':
        return f"v_dot2_f32_bf16 v176, v{r2}, v178, v176"
    if tok == 'dot2c':
        return f"v_dot2c_f32_bf16 v176, v{r2}, v178"
    if tok == 'ds':
        return f"ds_read_b128 a[{64 + 4 * (n % 16)}:{67 + 4 * (n % 16)}], v179 offset:{(n % 16) * 1024}"
    if tok == 'dsv':
        return f"ds_read_b128 v[{184 + 4 * (n % 8)}:{187 + 4 * (n % 8)}], v179 offset:{(n % 16) * 1024}"
    if tok == 'ds64':
        return f"ds_read_b64 a[{64 + 2 * (n % 32)}:{65 + 2 * (n % 32)}], v183 offset:{(n % 32) * 512}"
    if tok == 'dma':
        return f"buffer_load_dwordx4 v180, s[16:19], s21 offen offset:{(n % 4) * 1024} lds"
    if tok == 'dmag':
        return f"global_load_lds_dwordx4 v180, s[24:25] offset:{(n % 4) * 1024}"
    if tok == 'dmat':
        return f"buffer_load_dwordx4 off, s[36:39], s21 offset:{(n % 4) * 1024} lds"
    if tok == 'st':
        return f"buffer_store_dwordx4 v[216:219], v180, s[12:15], s21 offen offset:{(n % 4) * 1024}"
    if tok == 'dsw':
        return f"ds_write_b128 v179, v[216:219] offset:{65536 - 1024 * (1 + n % 4)}"
    if tok == 'gld':
        return f"buffer_load_dwordx4 v[{216 + 4 * (n % 4)}:{219 + 4 * (n % 4)}], v180, s[16:19], s21 offen offset:{(n % 4) * 1024}"
    if tok == 'snop':
        return "s_nop 0"
    if tok == 'salu':
        return "s_add_u32 s30, s30, 1"
    if tok == 'wait':
        return "s_waitcnt lgkmcnt(8)"
    if tok == 'vwait':
        return "s_waitcnt vmcnt(8)"
    if tok == 'fma':
        return f"v_fma_f32 v{160 + n % 8}, v{r2}, v{r2}, v{r2}"
    if tok == 'cvti':
        return f"v_cvt_f32_i32 v{160 + n % 8}, v{r2}"
    if tok == 'perm':
        return f"v_perm_b32 v{160 + n % 8}, v{r2}, v{r2}, v178"
    if tok == 'm4':
        return f"v_mfma_f32_4x4x4_16b_bf16 v[240:243], v[{144 + 2 * (n % 8)}:{145 + 2 * (n % 8)}], v[244:245], v[240:243]"
    if tok == '':
        return None
    raise ValueError(tok)


def gen(shape, patterns, nm=64, chain='rot', iters=64):
    L = []
    e = L.append
    e("s_cmp_ge_u32 s2, 256")
    e("s_cbranch_scc1 L_done")
    e("s_load_dwordx2 s[24:25], s[0:1], 72")
    e("s_load_dwordx2 s[4:5], s[0:1], 0")
    e("v_and_b32 v181, 63, v0")
    e("v_lshrrev_b32 v182, 6, v0")
    e("s_nop 0")
    e("v_readfirstlane_b32 s20, v182")
    e("s_waitcnt lgkmcnt(0)")
    e("s_mov_b32 s16, s24")
    e("s_and_b32 s17, s25, 0xffff")
    e("s_mov_b32 s18, 0x100000")
    e("s_mov_b32 s19, 0x20000")
    e("s_mov_b32 s8, s4")
    e("s_and_b32 s9, s5, 0xffff")
    e("s_mov_b32 s10, 0x1000000")
    e("s_mov_b32 s11, 0x20000")
    e("s_mov_b32 s36, s24")
    e("s_and_b32 s37, s25, 0xffff")
    e("s_or_b32 s37, s37, 0x100000")
    e("s_mov_b32 s38, 0x10000")
    e("s_mov_b32 s39, 0x820000")
    e("s_add_u32 s12, s24, 0x2000000")
    e("s_addc_u32 s13, s25, 0")
    e("s_and_b32 s13, s13, 0xffff")
    e("s_mov_b32 s14, 0x100000")
    e("s_mov_b32 s15, 0x20000")
    e("v_lshlrev_b32 v180, 4, v181")
    e("v_lshlrev_b32 v179, 4, v181")
    e("s_lshl_b32 s21, s20, 14")
    e("s_mov_b32 m0, s21")
    e("s_mov_b32 s30, 0")
    for i in range(16):
        e(f"buffer_load_dwordx4 v180, s[8:11], s21 offen offset:{(i % 4) * 1024} lds")
        if i % 4 == 3:
            e("s_add_u32 m0, m0, 4096")
            e("s_add_u32 s21, s21, 4096")
    for i in range(32):
        e(f"buffer_load_dwordx4 a[{4 * i}:{4 * i + 3}], v180, s[8:11], s21 offen offset:{(i % 4) * 1024}")
        if i % 4 == 3:
            e("s_add_u32 s21, s21, 4096")
    e("s_lshl_b32 s21, s20, 14")
    e("s_mov_b32 m0, s21")
    for r in range(128):
        e(f"v_mov_b32 v{r}, 0")
        e(f"v_accvgpr_write_b32 a{128 + r}, 0")
    for r in range(128, 256):
        if r not in (179, 180, 181):
            e(f"v_mov_b32 v{r}, 0x3f800000" if r not in (176, 177) else f"v_mov_b32 v{r}, 0")
    e("v_mov_b32 v178, 0x3f803f80")
    for r in range(236, 240):
        e(f"v_mov_b32 v{r}, 0x3f803f80")
    e("v_lshlrev_b32 v183, 3, v181")
    e("s_waitcnt vmcnt(0)")
    e("s_barrier")
    e("s_mov_b32 s23, %d" % iters)
    e("s_memtime s[40:41]")
    e("s_memrealtime s[42:43]")
    e("s_waitcnt lgkmcnt(0)")
    e(".p2align 6")
    e("L_loop:")
    n = 0
    for g in range(nm):
        opts = chain.split(':')
        ar = br = 1
        accA = False
        for o in opts[1:]:
            if o[0] == 'A': ar = int(o[1:])
            if o[0] == 'B': br = int(o[1:])
            if o == 'acca': accA = True
        clen = 4
        onesN = 0
        for o in opts[1:]:
            if o[0] == 'C': clen = int(o[1:])
            if o[0] == 'O': onesN = int(o[1:])
        ia = (g // ar) % 16
        ib = ((g // br) * 3) % 16
        ak = 'a' if accA else 'v'
        off = 128 if accA else 0
        if shape == 32:
            acc = off + ((g % 8) * 16 if opts[0] == 'rot' else ((g // 8) % 8) * 16)
            e(f"v_mfma_f32_32x32x16_bf16 {ak}[{acc}:{acc + 15}], a[{64 + 4 * ia}:{67 + 4 * ia}], a[{4 * ib}:{4 * ib + 3}], {ak}[{acc}:{acc + 15}]")
        elif shape == 16:
            acc = off + ((g % 32) * 4 if opts[0] == 'rot' else ((g // clen) % 32) * 4)
            if onesN and g % onesN == onesN - 1:
                e(f"v_mfma_f32_16x16x32_bf16 v[232:235], v[236:239], a[{4 * ib}:{4 * ib + 3}], v[232:235]")
            else:
              e(f"v_mfma_f32_16x16x32_bf16 {ak}[{acc}:{acc + 3}], a[{64 + 4 * ia}:{67 + 4 * ia}], a[{4 * ib}:{4 * ib + 3}], {ak}[{acc}:{acc + 3}]")
        pat = patterns[g % len(patterns)]
        for tok in pat.split(','):
            t = filler(tok, n)
            n += 1
            if t:
                e(t)
    e("s_sub_u32 s23, s23, 1")
    e("s_cmp_lg_u32 s23, 0")
    e("s_cbranch_scc1 L_loop")
    e("s_memtime s[44:45]")
    e("s_memrealtime s[46:47]")
    e("s_waitcnt lgkmcnt(0) vmcnt(0)")
    e("s_add_u32 s24, s24, %d" % (64 << 20))
    e("s_addc_u32 s25, s25, 0")
    e("s_mov_b32 s28, s24")
    e("s_and_b32 s29, s25, 0xffff")
    e("s_mov_b32 s30, 0x100000")
    e("s_mov_b32 s31, 0x20000")
    e("s_sub_u32 s44, s44, s40")
    e("s_sub_u32 s46, s46, s42")
    e("s_lshl_b32 s32, s2, 2")
    e("s_add_u32 s32, s32, s20")
    e("s_lshl_b32 s32, s32, 4")
    e("s_nop 15")
    e("v_mov_b32 v240, s44")
    e("v_mov_b32 v241, s46")
    e("v_mov_b32 v242, 0")
    e("v_cmp_eq_u32 vcc, 0, v181")
    e("s_and_saveexec_b64 s[34:35], vcc")
    e("buffer_store_dwordx2 v[240:241], v242, s[28:31], s32 offen")
    e("s_mov_b64 exec, s[34:35]")
    e("L_done:")
    e("s_endpgm")
    txt = HEADER + "; @launch grid=(256,1,1) block=(256,1,1) lds=131072\n"
    txt += '.amdgcn_target "amdgcn-amd-amdhsa--gfx950"\n.text\n'
    txt += f".globl {KNAME}\n.p2align 8\n.type {KNAME},@function\n{KNAME}:\n"
    txt += '\n'.join(x if x.endswith(':') else '    ' + x for x in L) + '\n'
    txt += f""".section .rodata,"a"
.p2align 6
.amdhsa_kernel {KNAME}
  .amdhsa_next_free_vgpr 512
  .amdhsa_next_free_sgpr 102
  .amdhsa_accum_offset 256
  .amdhsa_group_segment_fixed_size 0
  .amdhsa_kernarg_size 80
  .amdhsa_user_sgpr_count 2
  .amdhsa_user_sgpr_kernarg_segment_ptr 1
  .amdhsa_system_sgpr_workgroup_id_x 1
  .amdhsa_float_denorm_mode_32 3
.end_amdhsa_kernel
"""
    return txt


if __name__ == "__main__":
    out = sys.argv[1]
    shape = int(sys.argv[2])
    chain = sys.argv[3]
    pats = sys.argv[4:]
    nm = 64 if shape == 32 else 128
    open(out, 'w').write(gen(shape, pats, nm=nm, chain=chain, iters=32))
```
